```python
import torch

def _softmax(x, axis=-1):
    return torch.softmax(x, dim=axis)
def _gelu(x):
    return torch.nn.functional.gelu(x, approximate="tanh")
def _silu(x):
    return torch.nn.functional.silu(x)
def _sigmoid(x):
    return torch.sigmoid(x)
def _layernorm(x, axis=-1, eps=1e-5):
    m = x.mean(dim=axis, keepdim=True)
    v = x.var(dim=axis, keepdim=True, unbiased=False)
    return (x - m) / torch.sqrt(v + eps)
def _scatter_add(tgt, idx, src, axis=0):
    return tgt.clone().index_add_(axis, idx, src)
def _segment_sum(src, seg, n):
    out = torch.zeros((n,) + src.shape[1:], dtype=src.dtype)
    return out.index_add_(0, seg, src)
def _pad(x, pw):
    flat = tuple(v for pair in reversed(pw) for v in pair)
    return torch.nn.functional.pad(x, flat)

kernel_name = 'standalone__qk_norm__prompt'

def setup_inputs():

    _w = (lambda a: (lambda t: t.to(torch.bfloat16) if t.is_floating_point() else t)(torch.as_tensor(a)))
    B, H, S, D = 4, 16, 2048, 448
    Dh = D // H
    return {
        "q": _w((lambda *s: torch.randn(*s, dtype=torch.bfloat16) * 0.05)(B, H, S, Dh)),
        "k": _w((lambda *s: torch.randn(*s, dtype=torch.bfloat16) * 0.05)(B, H, S, Dh)),
        "v": _w((lambda *s: torch.randn(*s, dtype=torch.bfloat16) * 0.8)(B, H, S, Dh)),
        "t": _w(torch.abs((lambda *s: torch.randn(*s, dtype=torch.bfloat16) * 0.8)(H)) + 1.0),
    }

def reference(q, k, v, t):
    eps = 1e-6
    qn = q / (torch.sqrt((q * q).sum(axis=-1, keepdims=True)) + eps)
    kn = k / (torch.sqrt((k * k).sum(axis=-1, keepdims=True)) + eps)
    logits = torch.einsum('bhqd,bhkd->bhqk', qn, kn) * t[None, :, None, None]
    attn = _softmax(logits, axis=-1)
    return torch.einsum('bhqk,bhkd->bhqd', attn, v)
```

```python
def R(base, n=1):
    return list(range(base, base + n))


def vt(base, n):
    return f"v{base}" if n == 1 else f"v[{base}:{base + n - 1}]"


class Op:
    __slots__ = ("text", "kind", "reads", "writes", "creads", "tag")

    def __init__(self, text, kind, reads=(), writes=(), creads=(), tag=None):
        self.text = text
        self.kind = kind
        self.reads = list(reads)
        self.writes = list(writes)
        self.creads = list(creads)
        self.tag = tag


VALU_KINDS = ("valu", "trans", "dot", "perm")


class Em:
    def __init__(self):
        self.lines = []
        self.pos = 0
        self.lastw = {}
        self.lastc = {}
        self.laststore = {}
        self.lgkm = []
        self.vm = []
        self.pend = {}
        self.nid = 0
        self.nops_inserted = 0
        self.log_nops = []

    def raw(self, text, slots=1):
        self.lines.append("    " + text)
        self.pos += slots

    def label(self, name):
        self.lines.append(name + ":")

    def comment(self, text):
        self.lines.append("    ; " + text)

    def nop(self, n):
        while n > 0:
            k = min(n, 16)
            self.raw(f"s_nop {k - 1}", k)
            n -= k

    def wait(self, lgkm=None, vm=None):
        parts = []
        if vm is not None and len(self.vm) > vm:
            parts.append(f"vmcnt({vm})")
            done = self.vm[: len(self.vm) - vm]
            self.vm = self.vm[len(self.vm) - vm:]
            self._retire("vm", done)
        if lgkm is not None and len(self.lgkm) > lgkm:
            assert lgkm <= 15
            parts.append(f"lgkmcnt({lgkm})")
            done = self.lgkm[: len(self.lgkm) - lgkm]
            self.lgkm = self.lgkm[len(self.lgkm) - lgkm:]
            self._retire("lgkm", done)
        if parts:
            self.raw("s_waitcnt " + " ".join(parts))

    def force_wait(self, text):
        self.raw("s_waitcnt " + text)
        if "vmcnt(0)" in text:
            self._retire("vm", self.vm)
            self.vm = []
        if "lgkmcnt(0)" in text:
            self._retire("lgkm", self.lgkm)
            self.lgkm = []

    def _retire(self, cnt, ids):
        ids = set(ids)
        for r in [r for r, (c, i) in self.pend.items() if c == cnt and i in ids]:
            del self.pend[r]

    def wait_id(self, cnt, oid):
        q = self.lgkm if cnt == "lgkm" else self.vm
        if oid not in q:
            return
        after = len(q) - 1 - q.index(oid)
        if cnt == "lgkm":
            self.wait(lgkm=min(after, 15))
        else:
            self.wait(vm=min(after, 63))

    def wait_all_dsw(self):
        ids = [i for i in self.lgkm if i in self.dswids]
        if ids:
            self.wait_id("lgkm", ids[-1])

    dswids = set()

    def emit(self, op):
        k = op.kind
        need_l = None
        need_v = None
        for r in op.reads + op.writes + op.creads:
            if r in self.pend:
                c, i = self.pend[r]
                q = self.lgkm if c == "lgkm" else self.vm
                after = len(q) - 1 - q.index(i)
                if c == "lgkm":
                    need_l = after if need_l is None else min(need_l, after)
                else:
                    need_v = after if need_v is None else min(need_v, after)
        if need_l is not None or need_v is not None:
            self.wait(lgkm=need_l, vm=need_v)
        req = 0
        why = None

        def need(p, n, w):
            nonlocal req, why
            gap = self.pos - p - 1
            if n - gap > req:
                req = n - gap
                why = w

        for r in op.reads + op.creads:
            if r in self.lastw:
                pk, p, tid = self.lastw[r]
                if pk in VALU_KINDS and k == "mfma":
                    need(p, 2, f"valu->mfma v{r}")
                if pk == "trans" and k in ("valu", "dot", "perm", "dsw", "vms", "vml", "dsr"):
                    need(p, 1, f"trans->use v{r}")
                if pk in VALU_KINDS and k == "perm":
                    need(p, 2, f"valu->perm v{r}")
                if pk in VALU_KINDS and op.tag == "rfl":
                    need(p, 1, f"valu->readfirstlane v{r}")
                if pk == "dot" and k != "dot":
                    need(p, 3, f"dot->use v{r}")
                if pk == "mfma":
                    if k == "mfma":
                        if r in op.creads and r not in op.reads:
                            if tid == tuple(op.creads):
                                pass
                            else:
                                need(p, 10, f"mfma->mfmaC overlap v{r}")
                        else:
                            need(p, 12, f"mfma->mfmaAB v{r}")
                    else:
                        need(p, 12, f"mfma->use v{r}")
        for r in op.writes:
            if r in self.lastw:
                pk, p, tid = self.lastw[r]
                if pk == "mfma" and k != "mfma":
                    need(p, 12, f"mfma->waw v{r}")
                if pk == "dot" and k != "dot":
                    need(p, 3, f"dot->waw v{r}")
            if k in VALU_KINDS and r in self.lastc:
                need(self.lastc[r], 7, f"mfmaC->valu war v{r}")
            if k in VALU_KINDS and r in self.laststore:
                need(self.laststore[r], 2, f"store->valu war v{r}")
        if req > 0:
            self.nops_inserted += req
            self.log_nops.append((len(self.lines), req, why, op.text))
            self.nop(req)
        p = self.pos
        self.raw(op.text)
        for r in op.creads:
            self.lastc[r] = p
        tid = tuple(op.writes)
        if k in ("dsr", "vml"):
            oid = self.nid
            self.nid += 1
            (self.lgkm if k == "dsr" else self.vm).append(oid)
            for r in op.writes:
                self.pend[r] = ("lgkm" if k == "dsr" else "vm", oid)
                self.lastw.pop(r, None)
        elif k in ("dsw", "vms"):
            oid = self.nid
            self.nid += 1
            (self.lgkm if k == "dsw" else self.vm).append(oid)
            if k == "dsw":
                self.dswids.add(oid)
            for r in op.reads:
                self.laststore[r] = p
        else:
            for r in op.writes:
                self.lastw[r] = (k, p, tid)
        return op

    def emit_all(self, ops):
        for o in ops:
            self.emit(o)

    def rel_state(self):
        base = self.pos
        lw = {r: (k, base - p, t) for r, (k, p, t) in self.lastw.items() if base - p < 24}
        lc = {r: base - p for r, p in self.lastc.items() if base - p < 24}
        ls = {r: base - p for r, p in self.laststore.items() if base - p < 24}
        lg = list(range(len(self.lgkm)))
        m = {o: n for n, o in enumerate(self.lgkm)}
        mv = {o: n for n, o in enumerate(self.vm)}
        pend = {r: (c, (m if c == "lgkm" else mv)[i]) for r, (c, i) in self.pend.items()}
        dsw = [n for n, o in enumerate(self.lgkm) if o in self.dswids]
        return (sorted(lw.items()), sorted(lc.items()), sorted(ls.items()), len(self.lgkm), len(self.vm),
                sorted(pend.items()), dsw)


def valu(text, reads, writes, kind="valu", tag=None):
    return Op(text, kind, reads, writes, tag=tag)


def v_exp(r):
    return Op(f"v_exp_f32 v{r}, v{r}", "trans", [r], [r])


def trans(name, d, s):
    return Op(f"{name} v{d}, v{s}", "trans", [s], [d])


def mfma_f16(D, A, B, C=None):
    if C is None:
        return Op(f"v_mfma_f32_32x32x16_f16 {vt(D,16)}, {vt(A,4)}, {vt(B,4)}, 0", "mfma", R(A, 4) + R(B, 4), R(D, 16))
    c = D if C == "D" else C
    return Op(f"v_mfma_f32_32x32x16_f16 {vt(D,16)}, {vt(A,4)}, {vt(B,4)}, {vt(c,16)}", "mfma", R(A, 4) + R(B, 4),
              R(D, 16), creads=R(c, 16))


def smfmac(D, A, B, idx):
    return Op(f"v_smfmac_f32_32x32x32_bf16 {vt(D,16)}, {vt(A,4)}, {vt(B,8)}, v{idx}", "mfma",
              R(A, 4) + R(B, 8) + [idx], R(D, 16), creads=R(D, 16))


def ds_read128(dst, addr, off):
    return Op(f"ds_read_b128 {vt(dst,4)}, v{addr} offset:{off}", "dsr", [addr], R(dst, 4))


def ds_read_tr(dst, addr, off):
    return Op(f"ds_read_b64_tr_b16 {vt(dst,2)}, v{addr} offset:{off}", "dsr", [addr], R(dst, 2))


def ds_write128(addr, src, off):
    return Op(f"ds_write_b128 v{addr}, {vt(src,4)} offset:{off}", "dsw", [addr] + R(src, 4), [])


def buf_load(dst, n, voff, srd, soff, off=0, flags=""):
    nm = {1: "dword", 2: "dwordx2", 3: "dwordx3", 4: "dwordx4"}[n]
    o = f" offset:{off}" if off else ""
    return Op(f"buffer_load_{nm} {vt(dst,n)}, v{voff}, s[{srd}:{srd+3}], {soff} offen{o}{flags}", "vml", [voff],
              R(dst, n))


def buf_store(src, n, voff, srd, soff, off=0):
    nm = {1: "dword", 2: "dwordx2", 3: "dwordx3", 4: "dwordx4"}[n]
    o = f" offset:{off}" if off else ""
    return Op(f"buffer_store_{nm} {vt(src,n)}, v{voff}, s[{srd}:{srd+3}], {soff} offen{o}", "vms",
              [voff] + R(src, n), [])


def salu(text):
    return Op(text, "salu")
```

```python
import copy
import sys
import os

sys.path.insert(0, os.path.dirname(__file__))
from emit import *

NAME = "standalone__qk_norm__prompt"

ROWB = 56
HEADB = 2048 * ROWB
TOTB = 64 * HEADB
CHUNK = 256
CHB = CHUNK * ROWB
BUFB = 32768
NBUF = 3

V_TID = 0
V_LANE = 1
V_KA = 2
V_VA = 3
V_KAN = 4
V_VAN = 5
V_WR = 6
V_ROW = 7
V_VROW = 8
V_IDX = 9
V_VM = 10
V_VC = 11
V_SS = 12
V_T2 = 13
V_INV = 14
V_C = 16
V_OROW = 17
QA = 18
QB = 26
KF = 34
VF = 42
OA = 50
OB = 66
SA = [82, 98]
SB = [114, 130]
KRAW = 146
VRAW = 154
KTMP = 162
KOUT = 176
NVGPR = 184

S_Q, S_K, S_V, S_T = 4, 6, 8, 10
S_O = 12
SRD_Q, SRD_K, SRD_V, SRD_O = 16, 20, 24, 28
S_HEAD = 32
S_W = 33
S_KV = 34
S_CNT = 35
S_BUF = 36
S_DELTA = 37
S_TB = 38
S_QOFF = 39
S_TMP = 40
S_TMP2 = 41
S_TMP3 = 42
S_CBUF = 43

EPS = 0x358637BD
LOG2E = 0x3FB8AA3B


def norm_task(raw, out, cmul=None, tmp=KTMP):
    p1 = []
    p1.append(Op(f"v_dot2_f32_bf16 v{V_SS}, v{raw}, v{raw}, 0", "dot", [raw], [V_SS]))
    for i in range(1, 7):
        p1.append(Op(f"v_dot2c_f32_bf16 v{V_SS}, v{raw+i}, v{raw+i}", "dot", [raw + i, V_SS], [V_SS]))
    for i in range(7):
        p1.append(valu(f"v_lshlrev_b32 v{tmp+2*i}, 16, v{raw+i}", [raw + i], [tmp + 2 * i]))
        p1.append(valu(f"v_and_b32 v{tmp+2*i+1}, 0xffff0000, v{raw+i}", [raw + i], [tmp + 2 * i + 1]))
    p2 = []
    p2.append(valu(f"v_mov_b32 v{V_T2}, v{V_SS}", [V_SS], [V_T2]))
    p2.append(Op(f"v_permlane32_swap_b32 v{V_SS}, v{V_T2}", "perm", [V_SS, V_T2], [V_SS, V_T2]))
    p2.append(valu(f"v_add_f32 v{V_SS}, v{V_SS}, v{V_T2}", [V_SS, V_T2], [V_SS]))
    p2.append(trans("v_sqrt_f32", V_SS, V_SS))
    p2.append(valu(f"v_add_f32 v{V_SS}, 0x{EPS:08x}, v{V_SS}", [V_SS], [V_SS]))
    p2.append(trans("v_rcp_f32", V_INV, V_SS))
    if cmul is not None:
        p2.append(valu(f"v_mul_f32 v{V_INV}, v{V_INV}, v{cmul}", [V_INV, cmul], [V_INV]))
    for i in range(7):
        a = tmp + 2 * i
        p2.append(valu(f"v_pk_mul_f32 v[{a}:{a+1}], v[{a}:{a+1}], v[{V_INV}:{V_INV+1}] op_sel_hi:[1,0]",
                       [a, a + 1, V_INV], [a, a + 1]))
    for i in range(7):
        a = tmp + 2 * i
        p2.append(valu(f"v_cvt_pk_f16_f32 v{out+i}, v{a}, v{a+1}", [a, a + 1], [out + i]))
    return p1, p2


def v_fix(vraw):
    ops = []
    for i in range(2):
        b = vraw + 4 * i
        ops.append(valu(f"v_and_or_b32 v{b+2}, v{b+2}, v{V_VM}, v{V_VC}", [b + 2, V_VM, V_VC], [b + 2]))
        ops.append(valu(f"v_and_b32 v{b+3}, v{b+3}, v{V_VM}", [b + 3, V_VM], [b + 3]))
    return ops


def kv_loads(kraw, vraw, soff):
    vl = [buf_load(vraw, 4, V_VROW, SRD_V, soff, 0), buf_load(vraw + 4, 4, V_VROW, SRD_V, soff, 16 * ROWB)]
    kl = [buf_load(kraw, 4, V_ROW, SRD_K, soff, 0), buf_load(kraw + 4, 3, V_ROW, SRD_K, soff, 16)]
    return vl, kl


def k_read(tile, m):
    a = V_KA if tile < 8 else V_KAN
    return ds_read128(KF + 4 * m, a, (tile % 8) * 2048 + m * 1024)


def v_read(tile, half):
    a = V_VA if tile < 8 else V_VAN
    base = 16384 + (tile % 8) * 2048 + half * 1024
    return [ds_read_tr(VF + 4 * half, a, base), ds_read_tr(VF + 4 * half + 2, a, base + 256)]


def step_groups(s, last_chunk):
    cur, nxt = s & 1, (s & 1) ^ 1
    do_qk = not (last_chunk and s == 7)
    do_kread = not (last_chunk and s >= 6)
    do_vnext = not (last_chunk and s == 7)
    E = lambda base, j: [v_exp(base + 4 * j + i) for i in range(4)]
    g = []
    g.append(([mfma_f16(SA[nxt], KF, QA, None)] if do_qk else []) + E(SA[cur], 0))
    g.append([smfmac(OB, VF + 4, SB[nxt] + 8, V_IDX)] + v_read(s, 1) + E(SA[cur], 1))
    g.append(([mfma_f16(SB[nxt], KF, QB, None)] if do_qk else []) + ([k_read(s + 2, 0)] if do_kread else [])
             + E(SA[cur], 2))
    g.append([smfmac(OA, VF, SA[cur], V_IDX)] + E(SA[cur], 3))
    g.append(([mfma_f16(SA[nxt], KF + 4, QA + 4, "D")] if do_qk else []) + E(SB[cur], 0))
    g.append(([mfma_f16(SB[nxt], KF + 4, QB + 4, "D")] if do_qk else []) + ([k_read(s + 2, 1)] if do_kread else [])
             + E(SB[cur], 1))
    g.append([smfmac(OA, VF + 4, SA[cur] + 8, V_IDX)] + E(SB[cur], 2))
    g.append([smfmac(OB, VF, SB[cur], V_IDX)] + (v_read(s + 1, 0) if do_vnext else []) + E(SB[cur], 3))
    return g


def chunk_body(em, last_chunk):
    side = []
    if not last_chunk:
        p1, p2 = norm_task(KRAW, KOUT)
        vl, kl = kv_loads(KRAW, VRAW, f"s{S_KV}")
        side += v_fix(VRAW)
        side += [ds_write128(V_WR, VRAW, 16384), ds_write128(V_WR, VRAW + 4, 16384 + 1024)]
        side += vl
        side += p1
        side += kl
        side += [salu(f"s_add_u32 s{S_KV}, s{S_KV}, {CHB}")]
        side += p2
        side += [ds_write128(V_WR, KOUT, 0), ds_write128(V_WR, KOUT + 4, 1024)]
    si = 0
    for s in range(8):
        groups = step_groups(s, last_chunk)
        if s == 0 and not last_chunk:
            em.force_wait("vmcnt(0)")
        if s == 6 and not last_chunk:
            assert si == len(side), f"side ops left {len(side)-si}"
            em.wait_all_dsw()
            em.raw("s_barrier")
        for gi, grp in enumerate(groups):
            nside = 2 if s < 1 else 1
            head, es = grp[:-4], grp[-4:]
            em.emit_all(head)
            em.emit(es[0])
            em.emit(es[1])
            if si < len(side) and s < 6:
                em.emit(side[si]); si += 1
                while si < len(side) and side[si].kind in ("salu",):
                    em.emit(side[si]); si += 1
            em.emit(es[2])
            em.emit(es[3])
            if nside >= 2 and si < len(side) and s < 6:
                em.emit(side[si]); si += 1
            elif s < 6 and si < len(side) and (len(side) - si) > (6 * 8 - (s * 8 + gi + 1)):
                em.emit(side[si]); si += 1
    if not last_chunk:
        em.emit(valu(f"v_mov_b32 v{V_KA}, v{V_KAN}", [V_KAN], [V_KA]))
        em.emit(valu(f"v_mov_b32 v{V_VA}, v{V_VAN}", [V_VAN], [V_VA]))
        em.emit(salu(f"s_add_u32 s{S_BUF}, s{S_BUF}, 1"))
        em.emit(salu(f"s_cmp_eq_u32 s{S_BUF}, {NBUF}"))
        em.emit(salu(f"s_cselect_b32 s{S_DELTA}, {-(NBUF-1)*BUFB & 0xffffffff:#x}, s{S_CBUF}"))
        em.emit(salu(f"s_cselect_b32 s{S_BUF}, 0, s{S_BUF}"))
        em.emit(valu(f"v_add_u32 v{V_KAN}, s{S_DELTA}, v{V_KAN}", [V_KAN], [V_KAN]))
        em.emit(valu(f"v_add_u32 v{V_VAN}, s{S_DELTA}, v{V_VAN}", [V_VAN], [V_VAN]))
        em.emit(valu(f"v_add_u32 v{V_WR}, s{S_DELTA}, v{V_WR}", [V_WR], [V_WR]))


def epilogue_store(em):
    for O in (OA, OB):
        t1, t2 = V_SS, V_T2
        em.emit(valu(f"v_mov_b32 v{t1}, v{O+12}", [O + 12], [t1]))
        em.emit(valu(f"v_mov_b32 v{t2}, v{O+12}", [O + 12], [t2]))
        em.emit(Op(f"v_permlane32_swap_b32 v{t1}, v{t2}", "perm", [t1, t2], [t1, t2]))
        em.emit(trans("v_rcp_f32", V_INV, t2))
        for i in range(0, 16, 2):
            em.emit(valu(f"v_pk_mul_f32 v[{O+i}:{O+i+1}], v[{O+i}:{O+i+1}], v[{V_INV}:{V_INV+1}] op_sel_hi:[1,0]",
                         [O + i, O + i + 1, V_INV], [O + i, O + i + 1]))
        dst = KTMP if O == OA else KTMP + 8
        for i in range(8):
            em.emit(valu(f"v_cvt_pk_bf16_f32 v{dst+i}, v{O+2*i}, v{O+2*i+1}", [O + 2 * i, O + 2 * i + 1], [dst + i]))
        base = 0 if O == OA else 32 * ROWB
        for gidx in range(3):
            em.emit(buf_store(dst + 2 * gidx, 2, V_OROW, SRD_O, f"s{S_QOFF}", base + 16 * gidx))
    em.raw(f"s_mov_b32 exec_hi, 0")
    em.emit(buf_store(KTMP + 6, 2, V_OROW, SRD_O, f"s{S_QOFF}", 48))
    em.emit(buf_store(KTMP + 8 + 6, 2, V_OROW, SRD_O, f"s{S_QOFF}", 32 * ROWB + 48))
    em.raw("s_endpgm")


def common_prologue(em):
    e = em.raw
    e(f"s_cmp_ge_u32 s2, 256")
    e(f"s_cbranch_scc1 L_exit")
    e(f"s_load_dwordx8 s[4:11], s[0:1], 0")
    e(f"s_load_dwordx2 s[12:13], s[0:1], 32")
    e(f"v_and_b32 v{V_LANE}, 63, v{V_TID}")
    e(f"v_lshrrev_b32 v{V_T2}, 6, v{V_TID}")
    e(f"s_nop 0")
    e(f"v_readfirstlane_b32 s{S_W}, v{V_T2}")
    e(f"s_and_b32 s{S_TMP}, s2, 7")
    e(f"s_lshr_b32 s{S_TMP2}, s2, 5")
    e(f"s_lshl_b32 s{S_TMP2}, s{S_TMP2}, 3")
    e(f"s_or_b32 s{S_TMP}, s{S_TMP}, s{S_TMP2}")
    e(f"s_mul_i32 s{S_HEAD}, s{S_TMP}, {HEADB}")
    e(f"s_and_b32 s{S_TMP}, s{S_TMP}, 15")
    e(f"s_lshr_b32 s{S_TMP2}, s{S_TMP}, 1")
    e(f"s_lshl_b32 s{S_TMP2}, s{S_TMP2}, 2")
    e(f"s_and_b32 s{S_TMP3}, s{S_TMP}, 1")
    e(f"s_waitcnt lgkmcnt(0)")
    e(f"s_load_dword s{S_TB}, s[{S_T}:{S_T+1}], s{S_TMP2}")
    for srd, p in ((SRD_Q, S_Q), (SRD_K, S_K), (SRD_V, S_V), (SRD_O, S_O)):
        e(f"s_mov_b32 s{srd}, s{p}")
        e(f"s_and_b32 s{srd+1}, s{p+1}, 0xffff")
        e(f"s_mov_b32 s{srd+2}, {TOTB}")
        e(f"s_mov_b32 s{srd+3}, 0x00020000")
    e(f"v_and_b32 v{V_SS}, 31, v{V_LANE}")
    e(f"v_lshrrev_b32 v{V_T2}, 5, v{V_LANE}")
    e(f"v_mul_u32_u24 v{V_ROW}, {ROWB}, v{V_SS}")
    e(f"v_lshl_add_u32 v{V_OROW}, v{V_T2}, 3, v{V_ROW}")
    e(f"v_mul_u32_u24 v{V_INV}, 28, v{V_T2}")
    e(f"v_add_u32 v{V_ROW}, v{V_ROW}, v{V_INV}")
    e(f"v_lshrrev_b32 v{V_SS}, 2, v{V_LANE}")
    e(f"v_mul_u32_u24 v{V_VROW}, {ROWB}, v{V_SS}")
    e(f"v_and_b32 v{V_SS}, 3, v{V_LANE}")
    e(f"v_lshl_add_u32 v{V_VROW}, v{V_SS}, 4, v{V_VROW}")
    e(f"s_mul_i32 s{S_TMP}, s{S_W}, {32*ROWB}")
    e(f"s_add_u32 s{S_KV}, s{S_HEAD}, s{S_TMP}")
    e(f"s_lshr_b32 s{S_TMP}, s2, 3")
    e(f"s_and_b32 s{S_TMP}, s{S_TMP}, 3")
    e(f"s_mul_i32 s{S_TMP}, s{S_TMP}, {512*ROWB}")
    e(f"s_mul_i32 s{S_TMP2}, s{S_W}, {64*ROWB}")
    e(f"s_add_u32 s{S_QOFF}, s{S_HEAD}, s{S_TMP}")
    e(f"s_add_u32 s{S_QOFF}, s{S_QOFF}, s{S_TMP2}")


def lds_addr_setup(em):
    e = em.raw
    e(f"v_and_b32 v{V_SS}, 3, v{V_LANE}")
    e(f"v_cmp_eq_u32 vcc, 3, v{V_SS}")
    e(f"v_mov_b32 v{V_T2}, 0x3f80")
    e(f"s_nop 1")
    e(f"v_cndmask_b32 v{V_VM}, -1, 0, vcc")
    e(f"v_cndmask_b32 v{V_VC}, 0, v{V_T2}, vcc")
    e(f"v_mov_b32 v{V_IDX}, 0xdddddddd")
    e(f"v_lshlrev_b32 v{V_KA}, 4, v{V_LANE}")
    e(f"s_lshl_b32 s{S_TMP}, s{S_W}, 11")
    e(f"v_add_u32 v{V_WR}, s{S_TMP}, v{V_KA}")
    e(f"v_lshrrev_b32 v{V_SS}, 5, v{V_LANE}")
    e(f"v_lshlrev_b32 v{V_VA}, 9, v{V_SS}")
    e(f"v_bfe_u32 v{V_SS}, v{V_LANE}, 2, 2")
    e(f"v_lshl_add_u32 v{V_VA}, v{V_SS}, 6, v{V_VA}")
    e(f"v_bfe_u32 v{V_SS}, v{V_LANE}, 4, 1")
    e(f"v_lshl_add_u32 v{V_VA}, v{V_SS}, 5, v{V_VA}")
    e(f"v_and_b32 v{V_SS}, 3, v{V_LANE}")
    e(f"v_lshl_add_u32 v{V_VA}, v{V_SS}, 3, v{V_VA}")
    e(f"v_mov_b32 v{KOUT+7}, 0x3c00")


def fast_path(em):
    e = em.raw
    K0 = SA[0]
    V0 = SA[0] + 8
    Q0 = SA[1]
    Q1 = SA[1] + 8
    vl0, kl0 = kv_loads(K0, V0, f"s{S_KV}")
    em.emit_all(kl0 + vl0)
    em.emit(buf_load(Q0, 4, V_ROW, SRD_Q, f"s{S_QOFF}", 0))
    em.emit(buf_load(Q0 + 4, 3, V_ROW, SRD_Q, f"s{S_QOFF}", 16))
    em.emit(buf_load(Q1, 4, V_ROW, SRD_Q, f"s{S_QOFF}", 32 * ROWB))
    em.emit(buf_load(Q1 + 4, 3, V_ROW, SRD_Q, f"s{S_QOFF}", 32 * ROWB + 16))
    e(f"s_add_u32 s{S_KV}, s{S_KV}, {CHB}")
    vl1, kl1 = kv_loads(KRAW, VRAW, f"s{S_KV}")
    em.emit_all(vl1 + kl1)
    e(f"s_add_u32 s{S_KV}, s{S_KV}, {CHB}")
    lds_addr_setup(em)
    e(f"v_mov_b32 v{V_C}, s{S_TB}")
    e(f"v_mul_f32 v{V_C}, 0x{LOG2E:08x}, v{V_C}")
    e(f"v_mul_f32 v{V_SS}, -0.5, v{V_C}")
    e(f"v_or_b32 v{V_SS}, 0x80000000, v{V_SS}")
    e(f"v_cvt_pk_f16_f32 v{QA+7}, v{V_SS}, 0")
    e(f"v_and_b32 v{QA+7}, 0xffff, v{QA+7}")
    e(f"v_mov_b32 v{QB+7}, v{QA+7}")
    p1, p2 = norm_task(K0, KOUT)
    em.emit_all(p1 + p2)
    em.emit(ds_write128(V_WR, KOUT, 0))
    em.emit(ds_write128(V_WR, KOUT + 4, 1024))
    em.emit_all(v_fix(V0))
    em.emit(ds_write128(V_WR, V0, 16384))
    em.emit(ds_write128(V_WR, V0 + 4, 16384 + 1024))
    e(f"v_add_u32 v{V_KAN}, {BUFB}, v{V_KA}")
    e(f"v_add_u32 v{V_VAN}, {BUFB}, v{V_VA}")
    p1, p2 = norm_task(Q0, QA, cmul=V_C)
    em.emit_all(p1 + p2)
    p1, p2 = norm_task(Q1, QB, cmul=V_C)
    em.emit_all(p1 + p2)
    em.emit(valu(f"v_add_u32 v{V_WR}, {BUFB}, v{V_WR}", [V_WR], [V_WR]))
    e(f"s_mov_b32 s{S_BUF}, 1")
    e(f"s_mov_b32 s{S_CBUF}, {BUFB}")
    for r in R(OA, 16) + R(OB, 16) + R(VF + 4, 4) + R(SB[1] + 8, 8):
        em.emit(valu(f"v_mov_b32 v{r}, 0", [], [r]))
    em.wait(lgkm=0)
    e("s_barrier")
    em.emit(k_read(0, 0))
    em.emit(k_read(0, 1))
    em.emit(mfma_f16(SA[0], KF, QA, None))
    em.emit(mfma_f16(SB[0], KF, QB, None))
    em.emit(mfma_f16(SA[0], KF + 4, QA + 4, "D"))
    em.emit(mfma_f16(SB[0], KF + 4, QB + 4, "D"))
    em.emit(k_read(1, 0))
    em.emit(k_read(1, 1))
    em.emit_all(v_read(0, 0))
    e(f"s_mov_b32 s{S_CNT}, 7")
    em.wait(lgkm=0)
    em.nop(16)
    t = copy.deepcopy(em)
    t.lines = []
    chunk_body(t, False)
    st1 = t.rel_state()
    t.lines = []
    t.log_nops = []
    chunk_body(t, False)
    st2 = t.rel_state()
    assert st1 == st2, "loop state not at fixed point"
    body = t.lines
    print("loop body nops:", t.log_nops, file=sys.stderr)
    em.lines.append(".p2align 6")
    em.label("L_loop")
    lines = em.lines + body
    t.lines = lines
    em2 = t
    em2.raw(f"s_sub_u32 s{S_CNT}, s{S_CNT}, 1")
    em2.raw(f"s_cmp_lg_u32 s{S_CNT}, 0")
    em2.raw(f"s_cbranch_scc1 L_loop")
    em2.log_nops = []
    chunk_body(em2, True)
    em2.emit(smfmac(OB, VF + 4, SB[1] + 8, V_IDX))
    print("final chunk nops:", em2.log_nops, file=sys.stderr)
    epilogue_store(em2)
    return em2


def slow_path(em):
    e = em.raw
    MA, MB = KRAW + 7, VRAW + 0
    M = {OA: SB[1] + 0, OB: SB[1] + 1}
    AL = SB[1] + 2
    MT = SB[1] + 3
    MT2 = SB[1] + 4
    Q0 = SA[1]
    Q1 = SA[1] + 8
    em.emit(buf_load(Q0, 4, V_ROW, SRD_Q, f"s{S_QOFF}", 0))
    em.emit(buf_load(Q0 + 4, 3, V_ROW, SRD_Q, f"s{S_QOFF}", 16))
    em.emit(buf_load(Q1, 4, V_ROW, SRD_Q, f"s{S_QOFF}", 32 * ROWB))
    em.emit(buf_load(Q1 + 4, 3, V_ROW, SRD_Q, f"s{S_QOFF}", 32 * ROWB + 16))
    lds_addr_setup(em)
    e(f"v_mov_b32 v{V_C}, s{S_TB}")
    e(f"v_mul_f32 v{V_C}, 0x{LOG2E:08x}, v{V_C}")
    e(f"v_mov_b32 v{QA+7}, 0")
    e(f"v_mov_b32 v{QB+7}, 0")
    p1, p2 = norm_task(Q0, QA)
    em.emit_all(p1 + p2)
    p1, p2 = norm_task(Q1, QB)
    em.emit_all(p1 + p2)
    for r in R(OA, 16) + R(OB, 16):
        em.emit(valu(f"v_mov_b32 v{r}, 0", [], [r]))
    for O in (OA, OB):
        em.emit(valu(f"v_mov_b32 v{M[O]}, 0xff800000", [], [M[O]]))
    e(f"s_mov_b32 s{S_CNT}, 8")
    em.force_wait("vmcnt(0) lgkmcnt(0)")
    em.nop(16)
    em.label("L_slow_chunk")
    vl, kl = kv_loads(KRAW, VRAW, f"s{S_KV}")
    em.emit_all(vl + kl)
    e(f"s_add_u32 s{S_KV}, s{S_KV}, {CHB}")
    em.force_wait("vmcnt(0) lgkmcnt(0)")
    e("s_barrier")
    p1, p2 = norm_task(KRAW, KOUT)
    em.emit_all(p1 + p2)
    em.emit(ds_write128(V_WR, KOUT, 0))
    em.emit(ds_write128(V_WR, KOUT + 4, 1024))
    em.emit_all(v_fix(VRAW))
    em.emit(ds_write128(V_WR, VRAW, 16384))
    em.emit(ds_write128(V_WR, VRAW + 4, 16384 + 1024))
    em.force_wait("lgkmcnt(0)")
    e("s_barrier")
    em.emit(valu(f"v_mov_b32 v{V_KAN}, v{V_KA}", [V_KA], [V_KAN]))
    em.emit(valu(f"v_mov_b32 v{V_VAN}, v{V_VA}", [V_VA], [V_VAN]))
    e(f"s_mov_b32 s{S_BUF}, 8")
    em.nop(16)
    em.label("L_slow_tile")
    em.emit(ds_read128(KF, V_KAN, 0))
    em.emit(ds_read128(KF + 4, V_KAN, 1024))
    em.emit(ds_read_tr(VF, V_VAN, 16384))
    em.emit(ds_read_tr(VF + 2, V_VAN, 16384 + 256))
    em.emit(ds_read_tr(VF + 4, V_VAN, 16384 + 1024))
    em.emit(ds_read_tr(VF + 6, V_VAN, 16384 + 1280))
    em.emit(valu(f"v_add_u32 v{V_KAN}, 2048, v{V_KAN}", [V_KAN], [V_KAN]))
    em.emit(valu(f"v_add_u32 v{V_VAN}, 2048, v{V_VAN}", [V_VAN], [V_VAN]))
    for O, Q, S in ((OA, QA, SA[0]), (OB, QB, SB[0])):
        em.emit(mfma_f16(S, KF, Q, None))
        em.emit(mfma_f16(S, KF + 4, Q + 4, "D"))
    for O, Q, S in ((OA, QA, SA[0]), (OB, QB, SB[0])):
        m = M[O]
        for i in range(16):
            em.emit(valu(f"v_mul_f32 v{S+i}, v{S+i}, v{V_C}", [S + i, V_C], [S + i]))
        em.emit(valu(f"v_max3_f32 v{MT}, v{S}, v{S+1}, v{S+2}", [S, S + 1, S + 2], [MT]))
        for i in range(3, 15, 2):
            em.emit(valu(f"v_max3_f32 v{MT}, v{MT}, v{S+i}, v{S+i+1}", [MT, S + i, S + i + 1], [MT]))
        em.emit(valu(f"v_max_f32 v{MT}, v{MT}, v{S+15}", [MT, S + 15], [MT]))
        em.emit(valu(f"v_mov_b32 v{MT2}, v{MT}", [MT], [MT2]))
        em.emit(Op(f"v_permlane32_swap_b32 v{MT}, v{MT2}", "perm", [MT, MT2], [MT, MT2]))
        em.emit(valu(f"v_max3_f32 v{MT}, v{MT}, v{MT2}, v{m}", [MT, MT2, m], [MT]))
        em.emit(valu(f"v_sub_f32 v{AL}, v{m}, v{MT}", [m, MT], [AL]))
        em.emit(trans("v_exp_f32", AL, AL))
        em.emit(valu(f"v_mov_b32 v{m}, v{MT}", [MT], [m]))
        for i in range(16):
            em.emit(valu(f"v_mul_f32 v{O+i}, v{O+i}, v{AL}", [O + i, AL], [O + i]))
        for i in range(16):
            em.emit(valu(f"v_sub_f32 v{S+i}, v{S+i}, v{m}", [S + i, m], [S + i]))
        for i in range(16):
            em.emit(v_exp(S + i))
        em.emit(smfmac(O, VF, S, V_IDX))
        em.emit(smfmac(O, VF + 4, S + 8, V_IDX))
    em.nop(16)
    e(f"s_sub_u32 s{S_BUF}, s{S_BUF}, 1")
    e(f"s_cmp_lg_u32 s{S_BUF}, 0")
    e(f"s_cbranch_scc1 L_slow_tile")
    e(f"s_sub_u32 s{S_CNT}, s{S_CNT}, 1")
    e(f"s_cmp_lg_u32 s{S_CNT}, 0")
    e(f"s_cbranch_scc1 L_slow_chunk")
    epilogue_store(em)


def main():
    em = Em()
    common_prologue(em)
    e = em.raw
    e(f"s_waitcnt lgkmcnt(0)")
    e(f"s_lshl_b32 s{S_TMP3}, s{S_TMP3}, 4")
    e(f"s_lshr_b32 s{S_TB}, s{S_TB}, s{S_TMP3}")
    e(f"s_lshl_b32 s{S_TB}, s{S_TB}, 16")
    e(f"s_and_b32 s{S_TMP}, s{S_TB}, 0x7fffffff")
    e(f"s_cmp_gt_u32 s{S_TMP}, 0x41300000")
    e(f"s_cbranch_scc1 L_slow")
    pre_lines = list(em.lines)
    slow = copy.deepcopy(em)
    slow.lines = []
    fast = fast_path(em)
    slow.label("L_slow")
    slow_path(slow)
    body = fast.lines + slow.lines + ["L_exit:", "    s_endpgm"]

    hdr = open(os.path.join(os.path.dirname(__file__), "header.txt")).read()
    out = hdr
    out += f"; @launch grid=(256,1,1) block=(512,1,1) lds={NBUF*BUFB}\n"
    out += f""".amdgcn_target "amdgcn-amd-amdhsa--gfx950"
.text
.globl {NAME}_kernel
.p2align 8
.type {NAME}_kernel,@function
{NAME}_kernel:
"""
    out += "\n".join(body) + "\n"
    out += f""".section .rodata,"a"
.p2align 6
.amdhsa_kernel {NAME}_kernel
  .amdhsa_next_free_vgpr {NVGPR}
  .amdhsa_next_free_sgpr 48
  .amdhsa_accum_offset {(NVGPR + 3) // 4 * 4}
  .amdhsa_group_segment_fixed_size 0
  .amdhsa_kernarg_size 56
  .amdhsa_user_sgpr_count 2
  .amdhsa_user_sgpr_kernarg_segment_ptr 1
  .amdhsa_system_sgpr_workgroup_id_x 1
.end_amdhsa_kernel
"""
    dst = sys.argv[1] if len(sys.argv) > 1 else f"cdna_kernels/{NAME}.s"
    open(dst, "w").write(out)
    print("wrote", dst, len(body), "lines", file=sys.stderr)


if __name__ == "__main__":
    main()
```
